```python
import torch

def _softmax(x, axis=-1):
    return torch.softmax(x, dim=axis)
def _gelu(x):
    return torch.nn.functional.gelu(x, approximate="tanh")
def _silu(x):
    return torch.nn.functional.silu(x)
def _sigmoid(x):
    return torch.sigmoid(x)
def _layernorm(x, axis=-1, eps=1e-5):
    m = x.mean(dim=axis, keepdim=True)
    v = x.var(dim=axis, keepdim=True, unbiased=False)
    return (x - m) / torch.sqrt(v + eps)
def _scatter_add(tgt, idx, src, axis=0):
    return tgt.clone().index_add_(axis, idx, src)
def _segment_sum(src, seg, n):
    out = torch.zeros((n,) + src.shape[1:], dtype=src.dtype)
    return out.index_add_(0, seg, src)
def _pad(x, pw):
    flat = tuple(v for pair in reversed(pw) for v in pair)
    return torch.nn.functional.pad(x, flat)

kernel_name = 'gated_mix__ssm_conv_h3__mha_block__prompt'

def setup_inputs():

    _w = (lambda a: (lambda t: t.to(torch.bfloat16) if t.is_floating_point() else t)(torch.as_tensor(a)))
    def _A_setup():
        B, S, D = 1, 2048, 448
        ks = 4
        return {
            "q": _w((lambda *s: torch.randn(*s, dtype=torch.bfloat16) * 0.05)(B, S, D)),
            "k": _w((lambda *s: torch.randn(*s, dtype=torch.bfloat16) * 0.4)(B, S, D)),
            "v": _w((lambda *s: torch.randn(*s, dtype=torch.bfloat16) * 0.4)(B, S, D)),
            "shift_k": _w((lambda *s: torch.randn(*s, dtype=torch.bfloat16) * 0.4)(D, ks) * 0.5),
            "ssm_k": _w((lambda *s: torch.randn(*s, dtype=torch.bfloat16) * 0.8)(D, S) * (1.0 / S ** 0.5)),
            "ssm_D": _w((lambda *s: torch.randn(*s, dtype=torch.bfloat16) * 0.4)(D)),
        }
    _A_in = _A_setup()

    def _B_setup():
        B, S, D, H = 1, 2048, 448, 16
        return {
            "x": _w((lambda *s: torch.randn(*s, dtype=torch.bfloat16) * 0.05)(B, S, D)),
            "wqkv": _w((lambda *s: torch.randn(*s, dtype=torch.bfloat16) * 0.8)(D, 3 * D)),
            "wo": _w((lambda *s: torch.randn(*s, dtype=torch.bfloat16) * 0.05)(D, D)),
        }
    _B_in = _B_setup()

    return {
        "A_q": _A_in["q"],
        "A_k": _A_in["k"],
        "A_v": _A_in["v"],
        "A_shift_k": _A_in["shift_k"],
        "A_ssm_k": _A_in["ssm_k"],
        "A_ssm_D": _A_in["ssm_D"],
        "B_x": _B_in["x"],
        "B_wqkv": _B_in["wqkv"],
        "B_wo": _B_in["wo"],
        "gate_w": _w((lambda *s: torch.randn(*s, dtype=torch.bfloat16) * 0.05)(448) * 16.0),
    }

def reference(A_q, A_k, A_v, A_shift_k, A_ssm_k, A_ssm_D, B_x, B_wqkv, B_wo, gate_w):
    def _A_ref(q, k, v, shift_k, ssm_k, ssm_D):
        B, S, D = q.shape
        ks = shift_k.shape[-1]
        k_pad = _pad(k, ((0, 0), (ks - 1, 0), (0, 0)))
        k_shift = torch.zeros_like(k)
        for t in range(ks):
            k_shift = k_shift + k_pad[:, t:t + S, :] * shift_k[:, ks - 1 - t][None, None, :]
        kv = k_shift * v
        L = 2 * S
        kv_pad = _pad(kv, ((0, 0), (0, S), (0, 0)))
        kf_pad = _pad(ssm_k, ((0, 0), (0, S)))
        kv_f = (lambda x, axes=(-2,-1): torch.fft.rfft2(x.float(), dim=axes))(kv_pad[:, None, :, :], axes=(1, 2))
        kf_f = (lambda x, axes=(-2,-1): torch.fft.rfft2(x.float(), dim=axes))(kf_pad[:, None, :], axes=(1, 2))
        kf_f = (lambda x, *d: x.permute(*d))(kf_f, 1, 2, 0)
        y_f = kv_f * kf_f[None, :, :, :]
        y = (lambda x, s, axes=(-2,-1): torch.fft.irfft2(x, s=s, dim=axes).to(torch.bfloat16))(y_f, (1, L), axes=(1, 2))[:, 0, :S, :]
        y = y + kv * ssm_D[None, None, :]
        return q * y

    def _B_ref(x, wqkv, wo):
        B, S, D = x.shape
        H = 16
        Dh = D // H
        qkv = (lambda x, *d: x.permute(*d))((x @ wqkv).reshape(B, S, 3, H, Dh), 2, 0, 3, 1, 4)
        q, k, v = qkv[0], qkv[1], qkv[2]
        scores = torch.einsum("bhqd,bhkd->bhqk", q, k) * (Dh ** -0.5)
        p = _softmax(scores, axis=-1)
        o = torch.einsum("bhqk,bhkd->bhqd", p, v)
        return (lambda x, *d: x.permute(*d))(o, 0, 2, 1, 3).reshape(B, S, D) @ wo

    x = A_q
    g = _sigmoid((x * gate_w).sum(-1, keepdims=True))
    a = _A_ref(x, A_k, A_v, A_shift_k, A_ssm_k, A_ssm_D)
    b = _B_ref(x, B_wqkv, B_wo)
    return g * a + (1 - g) * b
```

```python
import struct, sys, math

NAME = "gated_mix__ssm_conv_h3__mha_block__prompt"
HEADER = open("cdna_kernels/%s.s.ref" % NAME).read().split("; Override launch")[0]

QF, KVF, UB, GB, OF, WOF, XF, ZF = 0x0, 0x200000, 0x600000, 0x7E0000, 0x800000, 0xA00000, 0xB00000, 0xD00000
WS_BYTES = 0x1000000
NX = 2048 * 448 * 2

def f32bits(x):
    return struct.unpack("<I", struct.pack("<f", x))[0]

class Asm:
    def __init__(self):
        self.l = []
    def __call__(self, s=""):
        for line in s.strip("\n").split("\n"):
            line = line.strip()
            if not line:
                continue
            if line.endswith(":") or line.startswith("."):
                self.l.append(line)
            else:
                self.l.append("    " + line)
    def text(self):
        return "\n".join(self.l) + "\n"

def vr(a, n):
    return f"v[{a}:{a+n-1}]"

def srd(A, d, b, nbytes):
    A(f"""
    s_mov_b32 s{d}, s{b}
    s_mov_b32 s{d+1}, s{b+1}
    s_mov_b32 s{d+2}, {nbytes}
    s_mov_b32 s{d+3}, 0x00020000
    """)

def kernel_open(A, label):
    A(f"""
.globl {label}
.p2align 8
.type {label},@function
{label}:
""")

def descriptor(label, vgpr, sgpr=96):
    return f""".p2align 6
.amdhsa_kernel {label}
  .amdhsa_next_free_vgpr {vgpr}
  .amdhsa_next_free_sgpr {sgpr}
  .amdhsa_accum_offset {(vgpr + 3) // 4 * 4}
  .amdhsa_group_segment_fixed_size 0
  .amdhsa_kernarg_size 104
  .amdhsa_user_sgpr_count 2
  .amdhsa_user_sgpr_kernarg_segment_ptr 1
  .amdhsa_system_sgpr_workgroup_id_x 1
.end_amdhsa_kernel
"""

MF32 = "v_mfma_f32_32x32x16_bf16"
MF16 = "v_mfma_f32_16x16x32_bf16"
ONES = 0x3F803F80

def map_head_major(A, sh, srb):
    A(f"""
    s_and_b32 s{sh}, s2, 7
    s_lshr_b32 s{srb}, s2, 3
    s_lshr_b32 s3, s{srb}, 4
    s_lshl_b32 s{sh}, s{sh}, 1
    s_add_u32 s{sh}, s{sh}, s3
    s_and_b32 s{srb}, s{srb}, 15
    """)

def map_4x8(A, sh, srb):
    A(f"""
    s_and_b32 s3, s2, 1
    s_lshl_b32 s3, s3, 3
    s_lshr_b32 s{sh}, s2, 3
    s_and_b32 s{sh}, s{sh}, 7
    s_add_u32 s{sh}, s{sh}, s3
    s_and_b32 s3, s2, 6
    s_lshl_b32 s3, s3, 1
    s_lshr_b32 s{srb}, s2, 6
    s_add_u32 s{srb}, s{srb}, s3
    """)

K1_LDS_X = 86016
K1_LDS = K1_LDS_X + 65536

def gen_k1(A, opt):
    kernel_open(A, "k1_kernel")
    SH, SRB, SW = 40, 41, 42
    A("""
    s_cmp_ge_u32 s2, 256
    s_cbranch_scc1 k1_end
    s_load_dwordx4 s[4:7], s[0:1], 0
    s_load_dwordx4 s[20:23], s[0:1], 16
    s_load_dwordx2 s[24:25], s[0:1], 56
    s_load_dwordx2 s[26:27], s[0:1], 72
    s_load_dwordx2 s[28:29], s[0:1], 96
    v_lshrrev_b32 v1, 6, v0
    v_and_b32 v0, 63, v0
    """)
    (map_4x8 if opt.get("k1map") == "4x8" else map_head_major)(A, SH, SRB)
    A(f"""
    v_readfirstlane_b32 s{SW}, v1
    s_waitcnt lgkmcnt(0)
    """)
    srd(A, 8, 4, NX)
    srd(A, 16, 28, WS_BYTES)
    A(f"""
    s_cmp_ge_u32 s{SW}, 4
    s_cbranch_scc1 k1_helper
    """)
    srd(A, 12, 24, 448 * 1344 * 2)
    VW, VX, AX, AW = 2, 5, 9, 13
    VLIN = 15
    A("s_mov_b32 s30, 43691")
    for i in range(3):
        A(f"""
        v_add_u32 v20, {64*i}, v0
        v_mul_u32_u24 v21, s30, v20
        v_lshrrev_b32 v21, 19, v21
        v_mul_u32_u24 v22, 12, v21
        v_sub_u32 v22, v20, v22
        v_mul_u32_u24 v21, 0xa80, v21
        v_lshrrev_b32 v23, 2, v22
        v_mul_u32_u24 v23, 0x380, v23
        v_and_b32 v22, 3, v22
        v_lshlrev_b32 v22, 4, v22
        v_add3_u32 v{VW+i}, v21, v23, v22
        """)
        if i:
            A(f"v_subrev_u32 v{VW+i}, {1024*i}, v{VW+i}")
    A(f"""
    v_lshrrev_b32 v20, 3, v0
    v_mul_u32_u24 v20, 0x380, v20
    v_and_b32 v21, 7, v0
    v_lshrrev_b32 v22, 4, v0
    v_xor_b32 v21, v21, v22
    v_lshlrev_b32 v22, 4, v21
    v_xor_b32 v23, 64, v22
    v_add_u32 v{VX}, v20, v22
    v_add_u32 v{VX+1}, v20, v23
    v_add_u32 v{VX+1}, {8*896-1024}, v{VX+1}
    v_add_u32 v{VX+2}, {16*896-2048}, v{VX}
    v_add_u32 v{VX+3}, {16*896-2048}, v{VX+1}
    """)
    A(f"""
    s_mul_i32 s31, s{SW}, 43008
    s_mul_i32 s3, s{SH}, 56
    s_add_u32 s31, s31, s3
    s_lshl_b32 s3, s{SRB}, 2
    s_add_u32 s35, s3, s{SW}
    s_mul_i32 s32, s35, {32*896}
    s_mul_i32 s33, s{SW}, 3072
    s_lshl_b32 s34, s{SW}, 14
    s_add_u32 s34, s34, {K1_LDS_X}
    """)
    XS = 160
    for t in range(7):
        A(f"""
        s_add_u32 m0, s33, {t*12288}
        s_add_u32 s3, s31, {t*4*43008}
        """)
        for i in range(3):
            A(f"buffer_load_dwordx4 v{VW+i}, s[12:15], s3 offen offset:{1024*i} lds")
        A(f"s_add_u32 s3, s32, {128*t}")
        if t < 4:
            A(f"""
            s_add_u32 m0, s34, {t*4096}
            s_nop 0
            """)
            for i in range(4):
                A(f"buffer_load_dwordx4 v{VX+i}, s[8:11], s3 offen offset:{1024*i} lds")
        else:
            for i in range(4):
                A(f"buffer_load_dwordx4 {vr(XS+(t-4)*16+4*i,4)}, v{VX+i}, s[8:11], s3 offen offset:{1024*i}")
    A(f"""
    v_and_b32 v20, 31, v0
    v_lshrrev_b32 v21, 5, v0
    v_bfe_u32 v22, v0, 1, 3
    v_lshlrev_b32 v23, 7, v20
    v_add_u32 v23, s34, v23
    v_xor_b32 v24, v21, v22
    """)
    for s in range(4):
        A(f"""
        v_xor_b32 v25, {2*s}, v24
        v_lshl_add_u32 v{AX+s}, v25, 4, v23
        """)
    A(f"""
    v_bfe_u32 v22, v0, 2, 2
    v_lshl_add_u32 v22, v21, 3, v22
    v_mul_u32_u24 v22, 0xc0, v22
    v_bfe_u32 v23, v0, 4, 1
    v_lshl_add_u32 v22, v23, 5, v22
    v_and_b32 v23, 3, v0
    v_lshl_add_u32 v{AW}, v23, 3, v22
    v_add_u32 v{AW+1}, {14*3072}, v{AW}
    v_lshl_add_u32 v{VLIN}, v0, 4, s34
    """)
    ACC = 32
    FB = 96
    def reads(j):
        b = FB + (j % 3) * 16
        t, s = divmod(j, 4)
        L = [f"ds_read_b128 {vr(b,4)}, v{AX+s} offset:{(t % 4)*4096}"]
        base, jj = (AW, j) if j < 14 else (AW + 1, j - 14)
        for n in range(3):
            for hf in range(2):
                L.append(f"ds_read_b64_tr_b16 {vr(b+4+4*n+2*hf,2)}, v{base} offset:{jj*3072+n*64+hf*768}")
        return L
    def sync(t):
        L = [f"s_waitcnt vmcnt({7*(6-t)})"]
        if t >= 4:
            for i in range(4):
                L.append(f"ds_write_b128 v{VLIN}, {vr(XS+(t-4)*16+4*i,4)} offset:{(t-4)*4096+1024*i}")
        L.append("s_barrier")
        return L
    for x in sync(0) + reads(0) + reads(1):
        A(x)
    for j in range(28):
        b = FB + (j % 3) * 16
        nxt = []
        if j + 2 < 28:
            if (j + 2) % 4 == 0:
                nxt += sync((j + 2) // 4)
            nxt += reads(j + 2)
        c = (lambda n: "0") if j == 0 else (lambda n: vr(ACC + 16 * n, 16))
        m = [f"{MF32} {vr(ACC,16)}, {vr(b+4,4)}, {vr(b,4)}, {c(0)}",
             f"{MF32} {vr(ACC+16,16)}, {vr(b+8,4)}, {vr(b,4)}, {c(1)}",
             f"{MF32} {vr(ACC+32,16)}, {vr(b,4)}, {vr(b+12,4)}, {c(2)}"]
        A(f"s_waitcnt lgkmcnt({7 if j + 1 < 28 else 0})")
        third = (len(nxt) + 2) // 3
        for n in range(3):
            A(m[n])
            for x in nxt[n * third:(n + 1) * third]:
                A(x)
    PQ, PK, PV, SS = 96, 104, 112, 128
    cs = math.log2(math.e) / math.sqrt(28.0)
    A(f"""
    s_mov_b32 s30, {f32bits(cs):#x}
    s_mov_b32 s36, {ONES:#x}
    s_lshl_b32 s3, s{SH}, 6
    s_add_u32 s3, s3, s35
    s_lshl_b32 s37, s3, 11
    s_lshl_b32 s38, s3, 12
    s_add_u32 s38, s38, {KVF}
    v_lshlrev_b32 v1, 4, v0
    v_and_b32 v20, 31, v0
    v_mov_b32 v21, s36
    s_nop 7
    """)
    for r in range(16):
        A(f"v_mul_f32 v{ACC+r}, s30, v{ACC+r}")
    for r in range(8):
        A(f"v_cvt_pk_bf16_f32 v{PQ+r}, v{ACC+2*r}, v{ACC+2*r+1}")
    for r in range(8):
        A(f"v_cvt_pk_bf16_f32 v{PK+r}, v{ACC+16+2*r}, v{ACC+16+2*r+1}")
    A(f"""
    s_mov_b32 exec_lo, 0
    v_mov_b32 v{PQ+6}, 0
    v_mov_b32 v{PQ+7}, 0
    v_mov_b32 v{PK+6}, s36
    v_mov_b32 v{PK+7}, s36
    s_mov_b32 exec_lo, -1
    s_nop 1
    {MF32} {vr(SS,16)}, {vr(PK,4)}, {vr(PQ,4)}, 0
    {MF32} {vr(SS,16)}, {vr(PK+4,4)}, {vr(PQ+4,4)}, {vr(SS,16)}
    buffer_store_dwordx4 {vr(PK,4)}, v1, s[16:19], s38 offen
    buffer_store_dwordx4 {vr(PK+4,4)}, v1, s[16:19], s38 offen offset:1024
    buffer_store_dwordx4 {vr(PQ,4)}, v1, s[16:19], s37 offen
    v_cmp_eq_u32 s[44:45], 28, v20
    v_cmp_gt_u32 vcc, 28, v20
    """)
    for r in range(8):
        A(f"v_cvt_pk_bf16_f32 v{PV+r}, v{ACC+32+2*r}, v{ACC+32+2*r+1}")
    A("v_cndmask_b32 v22, 0, v21, s[44:45]")
    for r in range(8):
        A(f"v_cndmask_b32 v{PV+r}, v22, v{PV+r}, vcc")
    A(f"""
    buffer_store_dwordx4 {vr(PV,4)}, v1, s[16:19], s38 offen offset:2048
    buffer_store_dwordx4 {vr(PV+4,4)}, v1, s[16:19], s38 offen offset:3072
    v_max3_f32 v23, v{SS}, v{SS+1}, v{SS+2}
    """)
    for r in range(3, 15, 2):
        A(f"v_max3_f32 v23, v23, v{SS+r}, v{SS+r+1}")
    A(f"""
    v_max_f32 v23, v23, v{SS+15}
    s_mov_b32 s30, {f32bits(2.0**-7):#x}
    v_fma_f32 v23, abs(v23), s30, -v23
    s_mov_b32 exec_lo, 0
    v_cvt_pk_bf16_f32 v{PQ+6}, v23, 0
    s_mov_b32 exec_lo, -1
    buffer_store_dwordx4 {vr(PQ+4,4)}, v1, s[16:19], s37 offen offset:1024
    s_endpgm
    """)
    A("k1_helper:")
    srd(A, 12, 6, NX)
    srd(A, 32, 20, NX)
    srd(A, 36, 22, 448 * 8)
    srd(A, 44, 26, 896)
    KR, VRr, WR = 32, 48, 60
    A(f"""
    s_sub_u32 s{SW}, s{SW}, 4
    s_lshl_b32 s3, s{SRB}, 2
    s_add_u32 s30, s3, s{SW}
    v_lshrrev_b32 v1, 4, v0
    v_and_b32 v2, 15, v0
    s_lshl_b32 s3, s30, 2
    v_add_u32 v3, s3, v1
    v_mul_u32_u24 v4, 0x1c00, v3
    s_mul_i32 s31, s{SH}, 56
    v_lshl_add_u32 v5, v2, 2, s31
    v_add_u32 v4, v4, v5
    v_subrev_u32 v6, 2688, v4
    v_add_u32 v7, 3584, v4
    v_lshlrev_b32 v8, 2, v5
    """)
    for r in range(3):
        A(f"buffer_load_dword v{KR+r}, v6, s[12:15], 0 offen offset:{896*r}")
    for r in range(8):
        A(f"buffer_load_dword v{KR+3+r}, v{4 if r < 4 else 7}, s[12:15], 0 offen offset:{896*(r%4)}")
    for r in range(8):
        A(f"buffer_load_dword v{VRr+r}, v{4 if r < 4 else 7}, s[32:35], 0 offen offset:{896*(r%4)}")
    A(f"buffer_load_dwordx4 {vr(WR,4)}, v8, s[36:39], 0 offen")
    A(f"""
    s_lshl_b32 s3, s{SRB}, 7
    s_lshl_b32 s48, s{SH}, 3
    s_add_u32 s48, s48, s3
    s_lshl_b32 s3, s{SW}, 1
    s_add_u32 s48, s48, s3
    s_mul_i32 s49, s48, 896
    v_lshlrev_b32 v9, 4, v0
    v_cmp_gt_u32 vcc, 56, v0
    v_bfrev_b32 v10, -2
    s_nop 0
    v_cndmask_b32 v10, v10, v9, vcc
    buffer_load_dwordx4 v[100:103], v10, s[8:11], s49 offen
    buffer_load_dwordx4 v[104:107], v10, s[8:11], s49 offen offset:896
    buffer_load_dwordx4 v[108:111], v9, s[44:47], 0 offen
    """)
    A(f"""
    v_lshlrev_b32 v11, 11, v5
    v_lshl_add_u32 v11, v3, 4, v11
    v_cmp_gt_u32 vcc, 14, v2
    v_bfrev_b32 v12, -2
    s_mov_b32 s50, {UB}
    v_cndmask_b32 v11, v12, v11, vcc
    s_add_u32 s51, s50, 4096
    s_mov_b32 s52, 0xffff0000
    s_barrier
    s_waitcnt vmcnt(3)
    """)
    mark = len(A.l)
    KL, KH, W = 64, 76, 88
    for r in range(11):
        A(f"v_lshlrev_b32 v{KL+r}, 16, v{KR+r}")
        A(f"v_and_b32 v{KH+r}, s52, v{KR+r}")
    for c in range(2):
        A(f"""
        v_lshlrev_b32 v{W+4*c}, 16, v{WR+2*c}
        v_and_b32 v{W+4*c+1}, s52, v{WR+2*c}
        v_lshlrev_b32 v{W+4*c+2}, 16, v{WR+2*c+1}
        v_and_b32 v{W+4*c+3}, s52, v{WR+2*c+1}
        """)
    for c, K in ((0, KL), (1, KH)):
        for i in range(8):
            d = 16 + i
            A(f"""
            v_mul_f32 v{d}, v{K+i}, v{W+4*c+3}
            v_fmac_f32 v{d}, v{K+i+1}, v{W+4*c+2}
            v_fmac_f32 v{d}, v{K+i+2}, v{W+4*c+1}
            v_fmac_f32 v{d}, v{K+i+3}, v{W+4*c}
            """)
            if c == 0:
                A(f"v_lshlrev_b32 v24, 16, v{VRr+i}")
            else:
                A(f"v_and_b32 v24, s52, v{VRr+i}")
            A(f"v_mul_f32 v{d}, v{d}, v24")
        o = 112 + 4 * c
        for t in range(4):
            A(f"v_cvt_pk_bf16_f32 v{o+t}, v{16+7-2*t}, v{16+6-2*t}")
        A(f"buffer_store_dwordx4 {vr(o,4)}, v11, s[16:19], s{50+c} offen")
    A("s_waitcnt vmcnt(2)")
    for row in range(2):
        acc = 16 + row
        for i in range(4):
            A(f"""
            v_lshlrev_b32 v20, 16, v{100+4*row+i}
            v_lshlrev_b32 v21, 16, v{108+i}
            v_and_b32 v22, s52, v{100+4*row+i}
            v_and_b32 v23, s52, v{108+i}
            """)
            A(f"v_mul_f32 v{acc}, v20, v21" if i == 0 else f"v_fmac_f32 v{acc}, v20, v21")
            A(f"v_fmac_f32 v{acc}, v22, v23")
    for d in ("row_shr:1", "row_shr:2", "row_shr:4", "row_shr:8", "row_bcast:15 row_mask:0xa", "row_bcast:31 row_mask:0xc"):
        A("s_nop 1")
        for acc in (16, 17):
            A(f"v_add_f32_dpp v{acc}, v{acc}, v{acc} {d}")
    A(f"""
    s_nop 0
    v_cvt_pk_bf16_f32 v18, v16, v17
    s_mov_b32 s53, {f32bits(-math.log2(math.e)):#x}
    v_lshlrev_b32 v16, 16, v18
    v_and_b32 v17, s52, v18
    v_mul_f32 v16, s53, v16
    v_mul_f32 v17, s53, v17
    v_exp_f32 v16, v16
    v_exp_f32 v17, v17
    s_nop 0
    v_add_f32 v16, 1.0, v16
    v_add_f32 v17, 1.0, v17
    v_rcp_f32 v16, v16
    v_rcp_f32 v17, v17
    s_nop 0
    v_cvt_pk_bf16_f32 v18, v16, v17
    s_lshl_b32 s48, s48, 2
    s_add_u32 s48, s48, {GB}
    v_lshlrev_b32 v16, 16, v18
    v_and_b32 v17, s52, v18
    v_cmp_eq_u32 vcc, 63, v0
    v_mov_b32 v19, 0
    s_nop 0
    v_cndmask_b32 v19, v12, v19, vcc
    buffer_store_dwordx2 v[16:17], v19, s[16:19], s48 offen
    """)
    body = A.l[mark:]
    del A.l[mark:]
    step = int(opt.get("k1hb", 40))
    for i, x in enumerate(body):
        if i and i % step == 0:
            A("s_barrier")
        A.l.append(x)
    A("""
    k1_end:
    s_endpgm
    """)

K2_RED = 0
K2_FLAG = 49152
K2_MAX = K2_FLAG + 64
K2_CONV = K2_MAX + 2048 + 64
K2_CW = 13056
K2_LDS = K2_CONV + 4 * K2_CW

def gen_k2(A, opt):
    kernel_open(A, "k2_kernel")
    SH, SRB, SW = 40, 41, 42
    A("""
    s_cmp_ge_u32 s2, 256
    s_cbranch_scc1 k2_end
    s_load_dwordx2 s[28:29], s[0:1], 96
    s_load_dwordx2 s[4:5], s[0:1], 0
    s_load_dwordx4 s[20:23], s[0:1], 32
    s_load_dwordx2 s[24:25], s[0:1], 64
    v_lshrrev_b32 v1, 6, v0
    v_and_b32 v0, 63, v0
    """)
    map_head_major(A, SH, SRB)
    A(f"""
    v_readfirstlane_b32 s{SW}, v1
    v_lshlrev_b32 v1, 4, v0
    s_waitcnt lgkmcnt(0)
    """)
    srd(A, 16, 28, WS_BYTES)
    A(f"""
    s_cmp_ge_u32 s{SW}, 4
    s_cbranch_scc1 k2_helper
    s_setprio 2
    """)
    Q, O, S, PA, PB, KV = 16, 48, 112, 144, 148, 160
    VG = 2
    A(f"""
    s_lshl_b32 s3, s{SH}, 18
    s_lshl_b32 s30, s{SW}, 16
    s_add_u32 s30, s30, s3
    s_add_u32 s30, s30, {KVF}
    s_lshl_b32 s35, s{SH}, 17
    s_lshl_b32 s3, s{SRB}, 13
    s_add_u32 s35, s35, s3
    s_mov_b32 s34, 0
    """)
    def kvload(buf, part, so):
        return f"buffer_load_dwordx4 {vr(KV+16*buf+4*part,4)}, v1, s[16:19], {so} offen offset:{1024*part}"
    for i in range(4):
        A(f"""
        s_add_u32 s3, s{SW}, {i}
        s_and_b32 s3, s3, 3
        s_lshl_b32 s3, s3, 11
        s_add_u32 s3, s3, s35
        buffer_load_dwordx4 {vr(Q+8*i,4)}, v1, s[16:19], s3 offen
        buffer_load_dwordx4 {vr(Q+8*i+4,4)}, v1, s[16:19], s3 offen offset:1024
        """)
    A(f"""
    s_lshl_b32 s3, s{SRB}, 2
    s_add_u32 s36, s3, s{SW}
    s_lshl_b32 s3, s36, 7
    s_add_u32 s3, s3, {GB}
    v_and_b32 v3, 31, v0
    v_lshlrev_b32 v3, 2, v3
    buffer_load_dword v{VG}, v3, s[16:19], s3 offen
    k2_pass:
    """)
    for t in range(3):
        A(f"s_add_u32 s3, s30, {4096*t}")
        for p in range(4):
            A(kvload(t, p, "s3"))
    A(f"s_add_u32 s31, s30, {3*4096}")
    for r in range(64):
        A(f"v_mov_b32 v{O+r}, 0")
    for r in range(4):
        A(f"v_mov_b32 v{PB+r}, 0")
        A(f"v_mov_b32 v{KV+48+12+r}, 0")
    A(f"""
    s_mov_b32 s33, 4
    s_waitcnt vmcnt(8)
    {MF32} {vr(S,16)}, {vr(KV,4)}, {vr(Q,4)}, 0
    {MF32} {vr(S,16)}, {vr(KV+4,4)}, {vr(Q+4,4)}, {vr(S,16)}
    s_nop 11
    .p2align 6
    k2_loop:
    """)
    for kb in range(4):
        for qt in range(4):
            n = kb * 4 + qt
            sa, sb = S + 16 * (n % 2), S + 16 * ((n + 1) % 2)
            kn, qn = (kb, qt + 1) if qt < 3 else ((kb + 1) % 4, 0)
            kp, qp = (kb, qt - 1) if qt > 0 else ((kb - 1) % 4, 3)
            def ex(i0, p0):
                for i in range(i0, i0 + 4):
                    A(f"v_exp_f32 v{sa+i}, v{sa+i}")
                A(f"v_cvt_pk_bf16_f32 v{p0}, v{sa+i0}, v{sa+i0+1}")
                A(f"v_cvt_pk_bf16_f32 v{p0+1}, v{sa+i0+2}, v{sa+i0+3}")
            if qt == 3:
                A("s_waitcnt vmcnt(8)")
            A(f"{MF32} {vr(sb,16)}, {vr(KV+16*kn,4)}, {vr(Q+8*qn,4)}, 0")
            ex(0, PA)
            A(f"{MF32} {vr(sb,16)}, {vr(KV+16*kn+4,4)}, {vr(Q+8*qn+4,4)}, {vr(sb,16)}")
            ex(4, PA + 2)
            A(f"{MF32} {vr(O+16*qp,16)}, {vr(KV+16*kp+12,4)}, {vr(PB,4)}, {vr(O+16*qp,16)}")
            lb = (kb - 1) % 4
            if qt == 0:
                if kb == 1:
                    A(f"""
                    s_cmp_eq_u32 s33, 1
                    s_cselect_b32 s31, 0x40000000, s31
                    """)
                A(kvload(lb, 0, "s31"))
            elif qt == 1:
                A(kvload(lb, 2, "s31"))
            ex(8, PB)
            A(f"{MF32} {vr(O+16*qt,16)}, {vr(KV+16*kb+8,4)}, {vr(PA,4)}, {vr(O+16*qt,16)}")
            if qt == 0:
                A(kvload(lb, 1, "s31"))
            elif qt == 1:
                A(kvload(lb, 3, "s31"))
                A("s_add_u32 s31, s31, 4096")
            ex(12, PB + 2)
    A(f"""
    s_sub_u32 s33, s33, 1
    s_cmp_lg_u32 s33, 0
    s_cbranch_scc1 k2_loop
    s_nop 0
    {MF32} {vr(O+48,16)}, {vr(KV+48+12,4)}, {vr(PB,4)}, {vr(O+48,16)}
    """)
    for i in range(1, 4):
        A(f"""
        s_add_u32 s3, s{SW}, {i}
        s_and_b32 s3, s3, 3
        s_mul_i32 s3, s3, 12288
        s_add_u32 s3, s3, {K2_RED + (i-1)*4096}
        v_add_u32 v4, s3, v1
        """)
        if i == 3:
            A("s_nop 7")
        for c in range(4):
            A(f"ds_write_b128 v4, {vr(O+16*i+4*c,4)} offset:{1024*c}")
    A(f"""
    v_add_f32 v5, v{O+12}, v{O+28}
    v_add_f32 v6, v{O+44}, v{O+60}
    v_add_f32 v5, v5, v6
    s_mov_b32 s3, {f32bits(2.0**64):#x}
    v_cmp_ngt_f32 vcc, s3, v5
    s_lshl_b32 s3, s{SW}, 2
    s_add_u32 s3, s3, {K2_FLAG}
    v_mov_b32 v6, s3
    s_nop 0
    v_mov_b32 v5, vcc_hi
    ds_write_b32 v6, v5
    s_mul_i32 s3, s{SW}, 12288
    v_add_u32 v4, s3, v1
    v_mov_b32 v6, {K2_FLAG}
    s_waitcnt vmcnt(0) lgkmcnt(0)
    s_barrier
    ds_read_b128 v[8:11], v6
    """)
    R = 160
    for i in range(12):
        A(f"ds_read_b128 {vr(R+4*i,4)}, v4 offset:{K2_RED + 1024*i}")
    A(f"""
    s_waitcnt lgkmcnt(12)
    v_or_b32 v8, v8, v9
    v_or3_b32 v8, v8, v10, v11
    s_nop 0
    v_readfirstlane_b32 s3, v8
    s_andn2_b32 s3, s3, s34
    s_cbranch_scc1 k2_truemax
    """)
    for i in range(3):
        for c in range(4):
            A(f"s_waitcnt lgkmcnt({11-4*i-c})")
            for r in range(4):
                A(f"v_add_f32 v{O+4*c+r}, v{O+4*c+r}, v{R+16*i+4*c+r}")
    A(f"""
    v_mov_b32 v5, v{O+12}
    v_mov_b32 v6, v{O+12}
    v_sub_f32 v7, 1.0, v{VG}
    s_nop 0
    v_permlane32_swap_b32 v5, v6
    s_lshl_b32 s3, s36, 15
    s_lshl_b32 s37, s{SH}, 11
    v_rcp_f32 v6, v6
    s_add_u32 s3, s3, s37
    s_add_u32 s3, s3, {OF}
    v_mul_f32 v6, v6, v7
    """)
    for r in range(16):
        A(f"v_mul_f32 v{O+r}, v6, v{O+r}")
    for r in range(8):
        A(f"v_cvt_pk_bf16_f32 v{S+r}, v{O+2*r}, v{O+2*r+1}")
    A(f"""
    buffer_store_dwordx4 {vr(S,4)}, v1, s[16:19], s3 offen
    buffer_store_dwordx4 {vr(S+4,4)}, v1, s[16:19], s3 offen offset:1024
    s_endpgm
    """)
    A(f"""
    k2_truemax:
    s_waitcnt lgkmcnt(0)
    s_mov_b32 s34, -1
    s_mov_b32 s31, s30
    s_mov_b32 s33, 16
    v_mov_b32 v8, 0xff800000
    v_mov_b32 v9, v8
    v_mov_b32 v10, v8
    v_mov_b32 v11, v8
    k2_tm_loop:
    {kvload(0, 0, "s31")}
    {kvload(0, 1, "s31")}
    s_add_u32 s31, s31, 4096
    s_waitcnt vmcnt(0)
    """)
    for i in range(4):
        A(f"""
        {MF32} {vr(S,16)}, {vr(KV,4)}, {vr(Q+8*i,4)}, 0
        {MF32} {vr(S,16)}, {vr(KV+4,4)}, {vr(Q+8*i+4,4)}, {vr(S,16)}
        s_nop 15
        """)
        for r in range(0, 16, 2):
            A(f"v_max3_f32 v{8+i}, v{8+i}, v{S+r}, v{S+r+1}")
    A(f"""
    s_sub_u32 s33, s33, 1
    s_cmp_lg_u32 s33, 0
    s_cbranch_scc1 k2_tm_loop
    """)
    for i in range(4):
        A(f"""
        v_mov_b32 v5, v{8+i}
        s_nop 1
        v_permlane32_swap_b32 v5, v{8+i}
        s_nop 1
        v_max_f32 v{8+i}, v{8+i}, v5
        s_add_u32 s3, s{SW}, {i}
        s_and_b32 s3, s3, 3
        s_lshl_b32 s3, s3, 9
        s_add_u32 s3, s3, {K2_MAX}
        v_lshl_add_u32 v{12+i}, v3, 2, s3
        s_lshl_b32 s3, s{SW}, 2
        v_add_u32 v6, s3, v{12+i}
        ds_write_b32 v6, v{8+i}
        """)
    A("""
    s_waitcnt lgkmcnt(0)
    s_barrier
    s_mov_b32 s37, 0xffff0000
    """)
    for i in range(4):
        A(f"""
        ds_read_b128 v[8:11], v{12+i}
        s_waitcnt lgkmcnt(0)
        v_max3_f32 v8, v8, v9, v10
        v_max_f32 v8, v8, v11
        v_sub_f32 v8, 0, v8
        v_and_b32 v9, s37, v8
        v_sub_f32 v8, v8, v9
        v_and_b32 v10, s37, v8
        v_sub_f32 v8, v8, v10
        v_and_b32 v8, s37, v8
        v_lshrrev_b32 v10, 16, v10
        s_mov_b32 exec_lo, 0
        v_or_b32 v{Q+8*i+6}, v{Q+8*i+6}, v9
        v_or_b32 v{Q+8*i+7}, v8, v10
        s_mov_b32 exec_lo, -1
        """)
    A("""
    s_barrier
    s_branch k2_pass
    """)
    A("k2_helper:")
    srd(A, 8, 4, NX)
    srd(A, 12, 20, NX)
    srd(A, 44, 24, 448 * 896)
    A(f"""
    s_sub_u32 s{SW}, s{SW}, 4
    s_mul_i32 s31, s{SW}, {K2_CW}
    s_add_u32 s31, s31, {K2_CONV}
    s_mul_i32 s30, s{SH}, 28
    s_lshl_b32 s3, s{SRB}, 1
    s_add_u32 s30, s30, s3
    s_lshr_b32 s3, s{SW}, 1
    s_add_u32 s30, s30, s3
    v_and_b32 v2, 31, v0
    v_lshrrev_b32 v3, 5, v0
    v_mul_u32_u24 v4, 0xe00, v3
    v_lshl_add_u32 v4, v2, 1, v4
    s_cmp_ge_u32 s{SRB}, 14
    s_cbranch_scc1 k2_noconv1
    s_lshl_b32 s32, s30, 12
    s_add_u32 s48, s20, s32
    s_addc_u32 s49, s21, 0
    s_load_dword s50, s[48:49], 0
    s_lshr_b32 s3, s30, 1
    s_lshl_b32 s3, s3, 2
    s_add_u32 s60, s22, s3
    s_addc_u32 s61, s23, 0
    s_load_dword s51, s[60:61], 0
    s_add_u32 m0, s31, 512
    s_add_u32 s3, s32, {UB}
    """)
    for i in range(4):
        A(f"buffer_load_dwordx4 v1, s[16:19], s3 offen offset:{1024*i} lds")
    A(f"""
    s_add_u32 m0, s31, {4608+32}
    s_add_u32 s3, s32, 2
    """)
    for i in range(4):
        A(f"buffer_load_dwordx4 v1, s[12:15], s32 offen offset:{1024*i} lds")
    A(f"""
    s_add_u32 m0, s31, {4608+4160+32}
    s_nop 0
    """)
    for i in range(4):
        A(f"buffer_load_dwordx4 v1, s[12:15], s3 offen offset:{1024*i} lds")
    A(f"""
    s_cmp_ge_u32 s{SW}, 2
    s_cbranch_scc1 k2_noconv1
    s_mul_i32 s3, s{SH}, {28*896}
    s_mul_i32 s33, s{SW}, {16*896}
    s_add_u32 s3, s3, s33
    s_lshl_b32 s33, s{SRB}, 6
    s_add_u32 s3, s3, s33
    s_add_u32 s33, s3, {8*896}
    """)
    for t in range(8):
        A(f"buffer_load_ushort v{40+t}, v4, s[44:47], {'s3' if t < 4 else 's33'} offen offset:{896*(t&3)}")
    A(f"""
    s_lshl_b32 s3, s{SRB}, 15
    s_lshl_b32 s33, s{SH}, 11
    s_add_u32 s3, s3, s33
    s_lshl_b32 s33, s{SW}, 10
    s_add_u32 s3, s3, s33
    s_add_u32 s3, s3, {WOF}
    s_waitcnt vmcnt(0)
    v_lshl_or_b32 v24, v41, 16, v40
    v_lshl_or_b32 v25, v43, 16, v42
    v_lshl_or_b32 v26, v45, 16, v44
    v_lshl_or_b32 v27, v47, 16, v46
    s_mov_b32 exec_lo, 0
    s_sub_u32 exec_hi, 0, s{SW}
    v_mov_b32 v26, 0
    v_mov_b32 v27, 0
    s_mov_b64 exec, -1
    buffer_store_dwordx4 v[24:27], v1, s[16:19], s3 offen
    k2_noconv1:
    s_cmp_ge_u32 s{SH}, 14
    s_cbranch_scc1 k2_noxf
    s_lshl_b32 s3, s{SRB}, 2
    s_add_u32 s33, s3, s{SW}
    s_mul_i32 s52, s33, {32*896}
    s_lshl_b32 s3, s{SH}, 6
    s_add_u32 s52, s52, s3
    s_add_u32 s53, s52, {8*896}
    s_add_u32 s54, s52, {16*896}
    s_add_u32 s55, s52, {24*896}
    """)
    for r in range(16):
        A(f"buffer_load_ushort v{48+r}, v4, s[8:11], s{52+(r>>2)} offen offset:{896*(r&3)}")
    A(f"""
    s_mul_i32 s3, s33, 28672
    s_lshl_b32 s33, s{SH}, 11
    s_add_u32 s3, s3, s33
    s_add_u32 s3, s3, {XF}
    s_waitcnt vmcnt(0)
    """)
    for r in range(8):
        A(f"v_lshl_or_b32 v{28+r}, v{49+2*r}, 16, v{48+2*r}")
    A(f"""
    buffer_store_dwordx4 v[28:31], v1, s[16:19], s3 offen
    buffer_store_dwordx4 v[32:35], v1, s[16:19], s3 offen offset:1024
    k2_noxf:
    s_cmp_ge_u32 s{SRB}, 14
    s_cbranch_scc1 k2_end
    """)
    AA, AB = 8, 12
    A(f"""
    v_mov_b32 v16, 0
    v_mov_b32 v17, 0
    v_lshl_add_u32 v5, v0, 3, s31
    ds_write_b64 v5, v[16:17]
    v_and_b32 v6, 7, v0
    v_lshl_add_u32 v6, v6, 2, s31
    ds_write_b32 v6, v16 offset:4608
    s_waitcnt lgkmcnt(0)
    s_lshl_b32 s50, s50, 16
    v_and_b32 v7, 7, v0
    v_cmp_eq_u32 vcc, 7, v7
    v_mov_b32 v18, s50
    s_bitcmp1_b32 s30, 0
    v_cndmask_b32 v18, 0, v18, vcc
    ds_write_b32 v6, v18 offset:{4608+4160}
    s_cselect_b32 s3, 0, 16
    s_lshl_b32 s51, s51, s3
    s_and_b32 s51, s51, 0xffff0000
    v_and_b32 v20, 15, v0
    v_lshrrev_b32 v21, 4, v0
    v_lshlrev_b32 v22, 3, v21
    v_sub_u32 v22, v20, v22
    v_add_u32 v22, 25, v22
    v_and_b32 v23, 1, v22
    v_sub_u32 v22, v22, v23
    v_mul_u32_u24 v23, 0x1040, v23
    v_lshl_add_u32 v22, v22, 1, v23
    s_add_u32 s3, s31, 4608
    v_add_u32 v{AA}, s3, v22
    v_add_u32 v{AA+1}, 1024, v{AA}
    v_add_u32 v{AA+2}, 2048, v{AA}
    v_add_u32 v{AA+3}, 3072, v{AA}
    v_lshl_add_u32 v22, v20, 1, v21
    s_add_u32 s3, s31, {512-32-7*64}
    v_lshl_add_u32 v{AB}, v22, 4, s3
    s_waitcnt vmcnt(0) lgkmcnt(0)
    s_bitcmp1_b32 s{SW}, 0
    s_cbranch_scc1 k2_conv1
    """)
    CA = 32
    FBUF = 64
    def conv(label, taus):
        mx = max(taus)
        def rd(c):
            b = FBUF + 64 * (c % 2)
            L = []
            for x in range(mx + 1):
                o = 16 * c + 128 * (x & 1)
                L.append(f"ds_read2_b32 {vr(b+4*x,2)}, v{AA+x//2} offset0:{o} offset1:{o+1}")
                L.append(f"ds_read2_b32 {vr(b+4*x+2,2)}, v{AA+x//2} offset0:{o+2} offset1:{o+3}")
                L.append(f"ds_read_b128 {vr(b+32+4*x,4)}, v{AB} offset:{64*(7-c)+512*x}")
            return L
        for x in rd(0):
            A(x)
        for c in range(8):
            b = FBUF + 64 * (c % 2)
            A("s_waitcnt lgkmcnt(0)")
            nxt = rd(c + 1) if c < 7 else []
            ms = []
            for x in range(mx + 1):
                for ti, tau in enumerate(taus):
                    if tau - x >= 0:
                        first = (c == 0 and x == 0)
                        ms.append(f"{MF16} {vr(CA+4*ti,4)}, {vr(b+4*x,4)}, {vr(b+32+4*(tau-x),4)}, {'0' if first else vr(CA+4*ti,4)}")
            for i, m in enumerate(ms):
                A(m)
                for x in nxt[2 * i:2 * i + 2]:
                    A(x)
        for ti, tau in enumerate(taus):
            A(f"s_mov_b32 s{56+ti}, {tau}")
    conv("a", [0, 3, 4, 7])
    A("""
    s_branch k2_conv_epi
    k2_conv1:
    """)
    conv("b", [1, 2, 5, 6])
    A(f"""
    k2_conv_epi:
    v_lshlrev_b32 v13, 6, v20
    v_lshl_add_u32 v13, v21, 4, v13
    v_lshrrev_b32 v22, 1, v21
    v_lshl_add_u32 v14, v20, 1, v22
    v_lshlrev_b32 v14, 4, v14
    v_and_b32 v23, 1, v21
    v_xor_b32 v24, 1, v23
    v_lshl_add_u32 v14, v24, 3, v14
    s_add_u32 s3, s31, 512
    v_add_u32 v14, s3, v14
    v_lshrrev_b32 v24, 1, v20
    v_mul_u32_u24 v15, 0x7000, v24
    v_and_b32 v24, 1, v20
    v_lshl_add_u32 v15, v24, 10, v15
    v_lshl_add_u32 v15, v23, 9, v15
    v_lshl_add_u32 v15, v22, 3, v15
    s_lshr_b32 s3, s30, 5
    s_lshl_b32 s33, s3, 11
    s_and_b32 s3, s30, 31
    s_lshl_b32 s3, s3, 4
    s_add_u32 s33, s33, s3
    s_add_u32 s33, s33, {ZF}
    s_mov_b32 s52, 0xffff0000
    """)
    for ti in range(4):
        A(f"""
        s_lshl_b32 s3, s{56+ti}, 10
        s_add_u32 s3, s3, {GB}
        buffer_load_dwordx4 {vr(64+4*ti,4)}, v13, s[16:19], s3 offen
        s_lshl_b32 s3, s{56+ti}, 9
        v_add_u32 v24, s3, v14
        ds_read_b64 {vr(80+2*ti,2)}, v24
        """)
    A("s_waitcnt vmcnt(0) lgkmcnt(0)")
    for ti in range(4):
        a = CA + 4 * ti
        A(f"""
        v_and_b32 v24, s52, v{81+2*ti}
        v_lshlrev_b32 v25, 16, v{81+2*ti}
        v_and_b32 v26, s52, v{80+2*ti}
        v_lshlrev_b32 v27, 16, v{80+2*ti}
        v_fmac_f32 v{a}, s51, v24
        v_fmac_f32 v{a+1}, s51, v25
        v_fmac_f32 v{a+2}, s51, v26
        v_fmac_f32 v{a+3}, s51, v27
        v_mul_f32 v{a}, v{a}, v{64+4*ti}
        v_mul_f32 v{a+1}, v{a+1}, v{65+4*ti}
        v_mul_f32 v{a+2}, v{a+2}, v{66+4*ti}
        v_mul_f32 v{a+3}, v{a+3}, v{67+4*ti}
        v_cvt_pk_bf16_f32 v{88+2*ti}, v{a}, v{a+1}
        v_cvt_pk_bf16_f32 v{89+2*ti}, v{a+2}, v{a+3}
        s_mul_i32 s3, s{56+ti}, {8*28672}
        s_add_u32 s3, s3, s33
        buffer_store_dwordx2 {vr(88+2*ti,2)}, v15, s[16:19], s3 offen
        """)
    A("""
    k2_end:
    s_endpgm
    """)

K3_LDS = 131072

def gen_k3(A, opt):
    kernel_open(A, "k3_kernel")
    SMT, SNT, SW = 40, 41, 42
    A(f"""
    s_cmp_ge_u32 s2, 224
    s_cbranch_scc1 k3_end
    s_load_dwordx2 s[28:29], s[0:1], 96
    s_load_dwordx2 s[4:5], s[0:1], 80
    v_lshrrev_b32 v1, 6, v0
    v_and_b32 v0, 63, v0
    s_lshr_b32 s3, s2, 3
    s_mul_i32 s{SMT}, s3, 37
    s_lshr_b32 s{SMT}, s{SMT}, 8
    s_mul_i32 s{SNT}, s{SMT}, 7
    s_sub_u32 s{SNT}, s3, s{SNT}
    s_and_b32 s3, s2, 7
    s_lshl_b32 s3, s3, 2
    s_add_u32 s{SMT}, s{SMT}, s3
    v_readfirstlane_b32 s{SW}, v1
    v_lshlrev_b32 v1, 4, v0
    s_waitcnt lgkmcnt(0)
    """)
    srd(A, 16, 28, WS_BYTES)
    srd(A, 8, 4, NX)
    A(f"""
    s_and_b32 s34, s{SW}, 1
    s_lshr_b32 s35, s{SW}, 1
    s_lshl_b32 s30, s{SMT}, 1
    s_lshl_b32 s31, s{SNT}, 1
    s_add_u32 s32, s30, s34
    s_lshl_b32 s32, s32, 15
    s_add_u32 s32, s32, {OF}
    s_add_u32 s33, s31, s34
    s_lshl_b32 s33, s33, 15
    s_add_u32 s33, s33, {WOF}
    s_cmp_eq_u32 s35, 0
    s_cselect_b32 s32, s32, s33
    s_lshl_b32 s36, s{SW}, 15
    s_add_u32 s30, s30, s34
    s_add_u32 s31, s31, s35
    s_mul_i32 s3, s30, 28672
    s_lshl_b32 s33, s31, 11
    s_add_u32 s3, s3, s33
    s_add_u32 s33, s3, {XF}
    s_add_u32 s3, s3, {ZF}
    buffer_load_dwordx4 v[32:35], v1, s[16:19], s33 offen
    buffer_load_dwordx4 v[36:39], v1, s[16:19], s33 offen offset:1024
    buffer_load_dwordx4 v[40:43], v1, s[16:19], s3 offen
    buffer_load_dwordx4 v[44:47], v1, s[16:19], s3 offen offset:1024
    """)
    for g in range(8):
        A(f"""
        s_add_u32 m0, s36, {4096*g}
        s_add_u32 s3, s32, {4096*g}
        """)
        for i in range(4):
            A(f"buffer_load_dwordx4 v1, s[16:19], s3 offen offset:{1024*i} lds")
    ACC = 16
    A(f"""
    s_lshl_b32 s3, s34, 15
    v_add_u32 v2, s3, v1
    s_lshl_b32 s3, s35, 15
    s_add_u32 s3, s3, 65536
    v_add_u32 v3, s3, v1
    s_mov_b32 s52, 0xffff0000
    v_and_b32 v4, 31, v0
    v_lshrrev_b32 v5, 5, v0
    v_mul_u32_u24 v5, 0xe00, v5
    v_lshl_add_u32 v4, v4, 1, v5
    s_mul_i32 s44, s30, {32*896}
    s_lshl_b32 s3, s31, 6
    s_add_u32 s44, s44, s3
    s_add_u32 s45, s44, {8*896}
    s_add_u32 s46, s44, {16*896}
    s_add_u32 s47, s44, {24*896}
    s_waitcnt vmcnt(32)
    """)
    for r in range(8):
        A(f"""
        v_lshlrev_b32 v6, 16, v{32+r}
        v_lshlrev_b32 v7, 16, v{40+r}
        v_and_b32 v8, s52, v{32+r}
        v_and_b32 v9, s52, v{40+r}
        v_mul_f32 v{ACC+2*r}, v6, v7
        v_mul_f32 v{ACC+2*r+1}, v8, v9
        """)
    FB = 48
    for c in range(8):
        A(f"""
        s_waitcnt vmcnt({28-4*c})
        s_barrier
        """)
        b = FB + 32 * (c % 2)
        for i in range(4):
            f = 4 * c + i
            A(f"ds_read_b128 {vr(b+8*i,4)}, v2 offset:{1024*f}")
            A(f"ds_read_b128 {vr(b+8*i+4,4)}, v3 offset:{1024*f}")
        if c > 0:
            pb = FB + 32 * ((c - 1) % 2)
            A("s_waitcnt lgkmcnt(8)")
            for i in range(4):
                A(f"{MF32} {vr(ACC,16)}, {vr(pb+8*i,4)}, {vr(pb+8*i+4,4)}, {vr(ACC,16)}")
    pb = FB + 32
    for i in range(4):
        A(f"s_waitcnt lgkmcnt({6-2*i})")
        A(f"{MF32} {vr(ACC,16)}, {vr(pb+8*i,4)}, {vr(pb+8*i+4,4)}, {vr(ACC,16)}")
    A("s_nop 11")
    for r in range(8):
        A(f"v_cvt_pk_bf16_f32 v{32+r}, v{ACC+2*r}, v{ACC+2*r+1}")
    for r in range(16):
        op = "buffer_store_short_d16_hi" if r & 1 else "buffer_store_short"
        A(f"{op} v{32+r//2}, v4, s[8:11], s{44+(r>>2)} offen offset:{896*(r&3)}")
    A("""
    k3_end:
    s_endpgm
    """)

def generate(opt):
    A = Asm()
    head = HEADER
    head += f"; @launch kernel=k1_kernel grid=(256,1,1) block=(512,1,1) lds={K1_LDS}\n"
    head += f"; @launch kernel=k2_kernel grid=(256,1,1) block=(512,1,1) lds={K2_LDS}\n"
    head += f"; @launch kernel=k3_kernel grid=(224,1,1) block=(256,1,1) lds={K3_LDS}\n"
    head += '.amdgcn_target "amdgcn-amd-amdhsa--gfx950"\n.text\n'
    gen_k1(A, opt)
    gen_k2(A, opt)
    gen_k3(A, opt)
    tail = '.section .rodata,"a"\n' + descriptor("k1_kernel", 208) + descriptor("k2_kernel", 224) + descriptor("k3_kernel", 112)
    return head + A.text() + tail

if __name__ == "__main__":
    opt = dict(a.split("=") for a in sys.argv[2:])
    out = sys.argv[1] if len(sys.argv) > 1 else f"cdna_kernels/{NAME}.s"
    open(out, "w").write(generate(opt))
```
